```python
import torch

def _softmax(x, axis=-1):
    return torch.softmax(x, dim=axis)
def _gelu(x):
    return torch.nn.functional.gelu(x, approximate="tanh")
def _silu(x):
    return torch.nn.functional.silu(x)
def _sigmoid(x):
    return torch.sigmoid(x)
def _layernorm(x, axis=-1, eps=1e-5):
    m = x.mean(dim=axis, keepdim=True)
    v = x.var(dim=axis, keepdim=True, unbiased=False)
    return (x - m) / torch.sqrt(v + eps)
def _scatter_add(tgt, idx, src, axis=0):
    return tgt.clone().index_add_(axis, idx, src)
def _segment_sum(src, seg, n):
    out = torch.zeros((n,) + src.shape[1:], dtype=src.dtype)
    return out.index_add_(0, seg, src)
def _pad(x, pw):
    flat = tuple(v for pair in reversed(pw) for v in pair)
    return torch.nn.functional.pad(x, flat)

kernel_name = 'gated_mix__compressed_kv_cla__mixer_token_mlp__prompt'

def setup_inputs():

    _w = (lambda a: (lambda t: t.to(torch.bfloat16) if t.is_floating_point() else t)(torch.as_tensor(a)))
    def _A_setup():
        B, H, Sq, Sk, D, M = 1, 32, 2048, 2048, 128, 512
        Dc = 4 * D
        return {
            "x": _w((lambda *s: torch.randn(*s, dtype=torch.bfloat16) * 0.05)(B, Sq, M)),
            "c_kv": _w((lambda *s: torch.randn(*s, dtype=torch.bfloat16) * 0.8)(B, Sk, Dc)),
            "w_q": _w((lambda *s: torch.randn(*s, dtype=torch.bfloat16) * 6.4)(M, H, D) * (M ** -0.5)),
            "w_uk": _w((lambda *s: torch.randn(*s, dtype=torch.bfloat16) * 6.4)(Dc, H, D) * (Dc ** -0.5)),
            "w_uv": _w((lambda *s: torch.randn(*s, dtype=torch.bfloat16) * 0.8)(Dc, H, D) * (Dc ** -0.5)),
            "w_o": _w((lambda *s: torch.randn(*s, dtype=torch.bfloat16) * 0.8)(H, D, M) * ((H * D) ** -0.5)),
        }
    _A_in = _A_setup()

    def _B_setup():
        B, S, D, F = 1, 2048, 512, 1792
        return {
            "x": _w((lambda *s: torch.randn(*s, dtype=torch.bfloat16) * 0.05)(B, S, D)),
            "w1": _w((lambda *s: torch.randn(*s, dtype=torch.bfloat16) * 3.2)(S, F) * (S ** -0.5)),
            "b1": _w((lambda *s: torch.randn(*s, dtype=torch.bfloat16) * 3.2)(F) * 0.02),
            "w2": _w((lambda *s: torch.randn(*s, dtype=torch.bfloat16) * 0.1)(F, S) * (F ** -0.5)),
            "b2": _w((lambda *s: torch.randn(*s, dtype=torch.bfloat16) * 0.1)(S) * 0.02),
        }
    _B_in = _B_setup()

    return {
        "A_x": _A_in["x"],
        "A_c_kv": _A_in["c_kv"],
        "A_w_q": _A_in["w_q"],
        "A_w_uk": _A_in["w_uk"],
        "A_w_uv": _A_in["w_uv"],
        "A_w_o": _A_in["w_o"],
        "B_x": _B_in["x"],
        "B_w1": _B_in["w1"],
        "B_b1": _B_in["b1"],
        "B_w2": _B_in["w2"],
        "B_b2": _B_in["b2"],
        "gate_w": _w((lambda *s: torch.randn(*s, dtype=torch.bfloat16) * 0.05)(512) * 16.0),
    }

def reference(A_x, A_c_kv, A_w_q, A_w_uk, A_w_uv, A_w_o, B_x, B_w1, B_b1, B_w2, B_b2, gate_w):
    def _A_ref(x, c_kv, w_q, w_uk, w_uv, w_o):
        B, Sq, M = x.shape[0], x.shape[1], x.shape[2]
        Sk = c_kv.shape[1]
        H, D = w_q.shape[1], w_q.shape[2]
        q = torch.einsum("bqm,mhd->bhqd", x, w_q)
        k = torch.einsum("bkc,chd->bhkd", c_kv, w_uk)
        v = torch.einsum("bkc,chd->bhkd", c_kv, w_uv)
        scores = torch.einsum("bhqd,bhkd->bhqk", q, k) * (D ** -0.5)
        off = Sk - Sq
        qi = torch.arange(Sq)[:, None]
        kj = torch.arange(Sk)[None, :]
        cmask = kj <= (qi + off)
        scores = torch.where(cmask[None, None], scores, -1e9)
        p = _softmax(scores, axis=-1)
        ctx = torch.einsum("bhqk,bhkd->bhqd", p, v)
        return torch.einsum("bhqd,hdm->bqm", ctx, w_o)

    def _B_ref(x, w1, b1, w2, b2):
        B, S, D = x.shape
        h = _layernorm(x, axis=-1)
        u = torch.einsum("bsd,sf->bdf", h, w1) + b1
        u = _gelu(u)
        y = torch.einsum("bdf,fs->bds", u, w2) + b2
        return (lambda x, *d: x.permute(*d))(y, 0, 2, 1)

    x = A_x
    g = _sigmoid((x * gate_w).sum(-1, keepdims=True))
    a = _A_ref(x, A_c_kv, A_w_q, A_w_uk, A_w_uv, A_w_o)
    b = _B_ref(x, B_w1, B_b1, B_w2, B_b2)
    return g * a + (1 - g) * b
```

```python
import re, sys

REG = re.compile(r'^(v|a|s)(\d+)$')
RNG = re.compile(r'^(v|a|s)\[(\d+):(\d+)\]$')

def regs(tok):
    tok = tok.strip()
    neg = tok.lstrip('-')
    if neg.startswith('abs(') and neg.endswith(')'): neg = neg[4:-1]
    if neg.startswith('|') and neg.endswith('|'): neg = neg[1:-1]
    m = REG.match(neg)
    if m: return [(m.group(1), int(m.group(2)))]
    m = RNG.match(neg)
    if m: return [(m.group(1), i) for i in range(int(m.group(2)), int(m.group(3)) + 1)]
    if neg == 'vcc': return [('s', 106), ('s', 107)]
    if neg == 'exec': return [('s', 126), ('s', 127)]
    if neg == 'm0': return [('s', 124)]
    return []

TRANS = ('v_exp_f32', 'v_log_f32', 'v_rcp_f32', 'v_rsq_f32', 'v_sqrt_f32', 'v_sin_f32', 'v_cos_f32')

class Ins:
    __slots__ = ('op', 'ops', 'txt', 'line', 'dst', 'src', 'kind', 'mods', 'srcC', 'srcAB', 'dpp', 'isdma')
    def __init__(self, txt, line):
        self.txt = txt; self.line = line
        t = txt.split(None, 1)
        self.op = t[0]
        rest = t[1] if len(t) > 1 else ''
        parts = []; cur = ''; d = 0
        for ch in rest:
            if ch in '[(': d += 1
            if ch in '])': d -= 1
            if ch == ',' and d == 0: parts.append(cur.strip()); cur = ''
            else: cur += ch
        if cur.strip(): parts.append(cur.strip())
        mods = ''
        if parts:
            last = parts[-1].split(None, 1)
            if len(last) > 1 and not self.op.startswith('s_waitcnt'):
                parts[-1] = last[0]; mods = last[1]
        self.ops = parts; self.mods = mods
        op = self.op
        self.dst = []; self.src = []; self.srcC = []; self.srcAB = []; self.dpp = 'quad_perm' in txt or 'row_' in mods or '_dpp' in op
        self.isdma = False
        R = [regs(p) for p in parts]
        allr = lambda xs: [r for x in xs for r in x]
        if op.startswith('v_mfma'):
            self.kind = 'mfma'; self.dst = R[0]; self.srcAB = R[1] + R[2]; self.srcC = R[3]; self.src = self.srcAB + self.srcC
        elif op.startswith('v_cmp'):
            self.kind = 'valu'; self.dst = R[0]; self.src = allr(R[1:])
        elif op.startswith('v_permlane') and 'swap' in op:
            self.kind = 'valu'; self.dst = R[0] + R[1]; self.src = R[0] + R[1]
        elif op.startswith('v_'):
            self.kind = 'valu'; self.dst = list(R[0]); self.src = allr(R[1:])
            if op.startswith(('v_fmac', 'v_writelane')) or self.dpp: self.src += R[0]
            if op.startswith('v_cndmask') and len(parts) == 3: self.src += regs('vcc')
            if op.startswith(('v_add_co', 'v_addc_co', 'v_sub_co')): self.dst += R[1]; self.src = allr(R[2:])
        elif op.startswith('ds_read') or op.startswith('ds_bpermute') or op.startswith('ds_swizzle'):
            self.kind = 'ds'; self.dst = R[0]; self.src = allr(R[1:])
        elif op.startswith('ds_write'):
            self.kind = 'ds'; self.src = allr(R)
        elif op.startswith('buffer_load'):
            self.kind = 'vmem'
            if ' lds' in ' ' + mods:
                self.isdma = True; self.src = allr(R) + regs('m0')
            else:
                self.dst = R[0]; self.src = allr(R[1:])
        elif op.startswith('buffer_store'):
            self.kind = 'vmem'; self.src = allr(R)
        elif op.startswith('buffer_atomic'):
            self.kind = 'vmem'; self.src = allr(R)
            if 'sc0' in mods: self.dst = R[0]
        elif op.startswith(('buffer_inv', 'buffer_wbl2')):
            self.kind = 'vmem'
        elif op.startswith('s_load') or op.startswith('s_memtime') or op.startswith('s_memrealtime'):
            self.kind = 'smem'; self.dst = R[0]; self.src = allr(R[1:])
        elif op.startswith(('s_cmp', 's_bitcmp')):
            self.kind = 'salu'; self.src = allr(R)
        elif op in ('s_waitcnt', 's_nop', 's_barrier', 's_endpgm', 's_sleep', 's_setprio', 's_branch') or op.startswith('s_cbranch'):
            self.kind = 'ctl'
        elif op in ('s_setpc_b64',):
            self.kind = 'ctl'; self.src = R[0]
        elif op in ('s_call_b64',):
            self.kind = 'ctl'; self.dst = R[0]
        elif op.startswith('s_'):
            self.kind = 'salu'; self.dst = R[0]; self.src = allr(R[1:])
            if op in ('s_addk_i32',): self.src += R[0]
            if op.endswith('saveexec_b64'): self.dst += regs('exec'); self.src += regs('exec')
        else:
            raise ValueError('unknown instruction: ' + txt)

def parse(text):
    ins = []; labels = {}
    for ln, raw in enumerate(text.split('\n'), 1):
        s = raw.split(';')[0].split('//')[0].strip()
        if not s: continue
        while True:
            m = re.match(r'^([A-Za-z_.$][\w.$]*):\s*(.*)$', s)
            if m: labels[m.group(1)] = len(ins); s = m.group(2).strip()
            else: break
        if not s or s.startswith('.'): continue
        ins.append(Ins(s, ln))
    return ins, labels

def val(tok, S):
    tok = tok.strip()
    m = REG.match(tok)
    if m and m.group(1) == 's': return S.get(int(m.group(2)))
    if tok == 'm0': return S.get(124)
    if tok in ('vcc', 'exec'): return None
    if RNG.match(tok): return None
    try:
        if re.match(r'^-?\d+\.\d*$', tok): return None
        return int(tok, 0) & 0xffffffff
    except ValueError:
        return None

def trace(ins, labels, entry, wg, wave, vcc_taken=lambda i: False, max_steps=3000000, wave_reg_hint=None):
    S = {2: wg}; scc = None
    pc = labels[entry]; out = []
    while True:
        i = ins[pc]; out.append(pc)
        if len(out) > max_steps: raise RuntimeError('trace too long')
        op = i.op; nxt = pc + 1
        if op == 's_endpgm': break
        if i.kind in ('salu',):
            o = i.ops
            def w(v):
                d = i.dst[0]
                S[d[1]] = None if v is None else v & 0xffffffff
            if op in ('s_mov_b32', 's_movk_i32'): w(val(o[1], S))
            elif op == 's_mov_b64':
                for d in i.dst: S[d[1]] = None
                mm = RNG.match(o[1]); dd = RNG.match(o[0])
                if mm and dd and mm.group(1) == 's':
                    for k in range(2): S[int(dd.group(2)) + k] = S.get(int(mm.group(2)) + k)
            elif op.startswith('s_cmp'):
                a, b = val(o[0], S), val(o[1], S)
                if a is None or b is None: scc = None
                else:
                    c = op[6:8]; sg = op.endswith('i32')
                    if sg:
                        a = a - (1 << 32) if a >> 31 else a; b = b - (1 << 32) if b >> 31 else b
                    scc = {'eq': a == b, 'lg': a != b, 'lt': a < b, 'le': a <= b, 'gt': a > b, 'ge': a >= b}[c]
            elif op.startswith('s_bitcmp'):
                a, b = val(o[0], S), val(o[1], S)
                scc = None if a is None or b is None else (((a >> b) & 1) == (1 if op.startswith('s_bitcmp1') else 0))
            elif op in ('s_add_u32', 's_add_i32', 's_sub_u32', 's_sub_i32', 's_mul_i32', 's_lshl_b32', 's_lshr_b32', 's_and_b32', 's_or_b32', 's_xor_b32', 's_min_u32', 's_max_u32', 's_addc_u32', 's_mul_hi_u32', 's_bfe_u32'):
                a, b = val(o[1], S), val(o[2], S)
                if a is None or b is None or op == 's_addc_u32': w(None); scc = None
                else:
                    if op.startswith('s_add'): r = a + b; scc = r >> 32 != 0
                    elif op.startswith('s_sub'): r = a - b; scc = a < b
                    elif op == 's_mul_i32': r = a * b
                    elif op == 's_mul_hi_u32': r = (a * b) >> 32
                    elif op == 's_lshl_b32': r = a << (b & 31); scc = (r & 0xffffffff) != 0
                    elif op == 's_lshr_b32': r = a >> (b & 31); scc = r != 0
                    elif op == 's_and_b32': r = a & b; scc = r != 0
                    elif op == 's_or_b32': r = a | b; scc = r != 0
                    elif op == 's_xor_b32': r = a ^ b; scc = r != 0
                    elif op == 's_min_u32': r = min(a, b); scc = a < b
                    elif op == 's_max_u32': r = max(a, b); scc = a > b
                    elif op == 's_bfe_u32': r = (a >> (b & 31)) & ((1 << ((b >> 16) & 0x7f)) - 1); scc = r != 0
                    w(r)
            elif op == 's_addk_i32':
                a = val(o[0], S); b = int(o[1], 0); w(None if a is None else a + b)
            elif op == 's_cselect_b32':
                if scc is None: w(None)
                else: w(val(o[1] if scc else o[2], S))
            else:
                for d in i.dst: S[d[1]] = None
                if op.endswith(('saveexec_b64',)) or op.startswith(('s_and_b64', 's_or_b64', 's_andn2_b64', 's_not')): scc = None
        elif i.kind == 'smem':
            for d in i.dst: S[d[1]] = None
        elif i.kind == 'valu':
            for d in i.dst:
                if d[0] == 's': S[d[1]] = None
            if op == 'v_readfirstlane_b32' and 'wave' in (i.mods or '') : pass
            if op == 'v_readfirstlane_b32' and HINT.get(i.line) == 'wave': S[i.dst[0][1]] = wave
        elif i.kind == 'ctl':
            if op == 's_branch': nxt = labels[i.ops[0]]
            elif op in ('s_cbranch_scc0', 's_cbranch_scc1'):
                if scc is None: raise RuntimeError(f'unknown scc at line {i.line}: {i.txt}')
                if scc == (op[-1] == '1'): nxt = labels[i.ops[0]]
            elif op in ('s_cbranch_vccnz', 's_cbranch_vccz'):
                t = vcc_taken(i)
                if t: nxt = labels[i.ops[0]]
            elif op == 's_cbranch_execz': pass
            elif op == 's_cbranch_execnz': pass
            elif op == 's_call_b64':
                d = i.dst[0][1]; S[d] = ('ret', pc + 1); nxt = labels[i.ops[1]]
            elif op == 's_setpc_b64':
                r = S.get(i.src[0][1]); assert isinstance(r, tuple), f'setpc unknown at {i.line}'; nxt = r[1]
        pc = nxt
    return out

HINT = {}

def check_trace(ins, tr, name=''):
    errs = []
    pos = 0
    valu_w = {}; trans_w = {}; mfma_w = {}; mfma_c = {}; valu_sw = {}; salu_m0 = -100; store_data = {}
    mfma_last_d = {}
    vm = []
    lg = []
    pend = {}
    def err(i, msg): errs.append(f'{name} line {i.line}: {msg}: {i.txt}')
    for idx in tr:
        i = ins[idx]; op = i.op
        if op == 's_nop':
            pos += int(i.ops[0], 0) + 1; continue
        if op == 's_waitcnt':
            t = ' '.join(i.ops) + ' ' + i.mods
            m = re.search(r'vmcnt\((\d+)\)', t)
            if m:
                n = int(m.group(1))
                while len(vm) > n:
                    d, p = vm.pop(0)
                    for r in d:
                        if pend.get(r) is p: del pend[r]
            m = re.search(r'lgkmcnt\((\d+)\)', t)
            if m:
                n = int(m.group(1))
                if any(k == 'smem' for _, k, _ in lg) and n > 0: err(i, 'counted lgkmcnt with smem outstanding')
                while len(lg) > n:
                    d, k, p = lg.pop(0)
                    for r in d:
                        if pend.get(r) is p: del pend[r]
            pos += 1; continue
        for r in i.src + i.dst:
            if r in pend and not (i.kind == 'mfma' and False):
                err(i, f'register {r} has outstanding load from line {pend[r].line}')
                del pend[r]
        def need(tab, r, n, what):
            if r in tab:
                d = pos - tab[r] - 1
                if d < n: err(i, f'{what} on {r}: {d} wait states < {n}')
        if i.kind == 'mfma':
            for r in i.src: need(valu_w, r, 2, 'VALU->MFMA')
            for r in i.srcAB: need(mfma_w, r, 12, 'MFMA D->MFMA A/B')
            if i.srcC:
                same = all(mfma_last_d.get(r) == tuple(i.srcC) for r in i.srcC)
                if not same:
                    for r in i.srcC: need(mfma_w, r, 10, 'MFMA D->MFMA C overlap')
            if i.dst != i.srcC:
                for r in i.dst: need(mfma_w, r, 10, 'MFMA D->MFMA D WAW')
        elif i.kind == 'valu':
            for r in i.src + i.dst: need(mfma_w, r, 12, 'MFMA D->VALU')
            for r in i.dst: need(mfma_c, r, 7, 'MFMA C read->VALU write')
            for r in i.dst: need(store_data, r, 2, 'store data WAR')
            if not op.startswith(TRANS):
                for r in i.src: need(trans_w, r, 1, 'trans->VALU')
            for r in i.src:
                if r[0] == 's': need(valu_sw, r, 2, 'VALU sgpr->VALU read')
            if op.startswith('v_cndmask'):
                pass
            if op.startswith(('v_readlane', 'v_readfirstlane')):
                for r in i.src: need(valu_w, r, 1, 'VALU->readlane')
            if op.startswith('v_permlane'):
                for r in i.src: need(valu_w, r, 2, 'VALU->permlane')
            if i.dpp:
                for r in i.src: need(valu_w, r, 2, 'VALU->DPP')
        elif i.kind in ('vmem', 'ds'):
            for r in i.src + i.dst: need(mfma_w, r, 12, 'MFMA D->mem')
            if i.kind == 'vmem':
                for r in i.src:
                    if r[0] == 's': need(valu_sw, r, 5, 'VALU sgpr->VMEM')
            if i.isdma:
                if pos - salu_m0 - 1 < 1: err(i, 'M0 write->LDS DMA needs 1 wait state')
            for r in i.dst: need(store_data, r, 1, 'store data WAR')
        elif i.kind == 'salu':
            pass
        if i.kind == 'mfma':
            for r in i.dst: mfma_w[r] = pos; mfma_last_d[r] = tuple(i.dst)
            for r in i.srcC: mfma_c[r] = pos
            for r in i.dst: valu_w.pop(r, None)
        elif i.kind == 'valu':
            for r in i.dst:
                if r[0] == 's': valu_sw[r] = pos
                else:
                    valu_w[r] = pos; mfma_last_d.pop(r, None)
                    if op.startswith(TRANS): trans_w[r] = pos
                    else: trans_w.pop(r, None)
        elif i.kind == 'salu':
            if ('s', 124) in i.dst: salu_m0 = pos
            for r in i.dst: valu_sw.pop(r, None)
        if i.kind == 'vmem':
            if op.startswith('buffer_store') and ('x4' in op or 'x3' in op):
                for r in regs(i.ops[0]): store_data[r] = pos
            vm.append((i.dst, i))
            for r in i.dst: pend[r] = i; mfma_last_d.pop(r, None)
            if len(vm) > 63: err(i, 'more than 63 vmem outstanding')
        elif i.kind == 'ds':
            lg.append((i.dst, 'ds', i))
            for r in i.dst: pend[r] = i; mfma_last_d.pop(r, None)
            if len(lg) > 15: pass
        elif i.kind == 'smem':
            lg.append((i.dst, 'smem', i))
            for r in i.dst: pend[r] = i
        pos += 1
    return errs

def check(text, entry, wgs=(0,), waves=(0, 1, 2, 3), vcc_policy=None, verbose=True):
    global HINT
    HINT = {}
    for ln, raw in enumerate(text.split('\n'), 1):
        if ';@wave' in raw: HINT[ln] = 'wave'
    ins, labels = parse(text)
    allerr = []
    for wg in wgs:
        for wv in waves:
            pol = vcc_policy or (lambda i: False)
            tr = trace(ins, labels, entry, wg, wv, vcc_taken=pol)
            e = check_trace(ins, tr, f'{entry} wg{wg} w{wv}')
            allerr += e
    seen = set(); out = []
    for e in allerr:
        k = e.split(' line ')[1]
        if k not in seen: seen.add(k); out.append(e)
    if verbose:
        for e in out[:40]: print('HAZARD', e)
        print(f'check {entry}: {len(out)} problems')
    return out
```

```python
from gen_common import *
from gen_proj import Proj, act_dma_voff

QSCALE = LOG2E / math.sqrt(128.0)
THR = 1024.0
NSLOT = 5
SLOT = 32768

class Attn:
    def __init__(self, p):
        self.p = p
        self.Q = [[V(192 + 32 * x + 4 * ks) for ks in range(8)] for x in range(2)]
        self.S = [[V(128 + 32 * x + 16 * par) for par in range(2)] for x in range(2)]
        self.P = [[V(96 + 16 * x + 8 * par) for par in range(2)] for x in range(2)]
        self.NM = [V(64), V(80)]
        self.E = [48, 56]
        self.l = [40, 41]; self.lt = [42, 43]; self.qh = [44, 45]; self.thr = 46; self.ninf = 47
        self.v_cur, self.v_prev, self.v_l16, self.v_dma = 32, 33, 34, 35
        self.vchk = 36; self.vthr = 37; self.g = [38, 39]
        self.tmp = 20
        self.O = [[A(64 * x + 16 * db) for db in range(4)] for x in range(2)]
        self.Kf = [A(128 + 4 * ks) for ks in range(8)]
        self.Vf = [A(160 + 4 * j) for j in range(8)]
        self.s_i, self.s_h = 60, 61
        self.s_slot, self.s_wslot, self.s_goff, self.s_cnt, self.s_u32, self.s_wm0 = 52, 53, 54, 55, 56, 57
        self.s_ret = 58
        self.s_m = 64
        self.rare_sites = []
        self.SRDKV = SRD0

    def k_reads(self, base_v, st):
        return [f"ds_read_b128 {self.Kf[ks].r(4)}, v{base_v} offset:{st*8192 + ks*1024}".replace(" offset:0", "") for ks in range(8)]
    def v_reads(self, base_v, st):
        return [f"ds_read_b128 {self.Vf[j].r(4)}, v{base_v} offset:{16384 + st*8192 + j*1024}" for j in range(8)]

    def pv_mfmas(self, blocks, par):
        o = []
        for k16 in range(2):
            for db in range(4):
                for x in blocks:
                    O = self.O[x][db]
                    o.append(f"v_mfma_f32_32x32x16_bf16 {O.r(16)}, {self.Vf[k16*4+db].r(4)}, {(self.P[x][par]+4*k16).r(4)}, {O.r(16)}")
        return o
    def qk_mfmas(self, blocks, par, masked):
        o = []
        for ks in range(8):
            for x in blocks:
                S = self.S[x][par]
                c = S.r(16) if (ks > 0 or x in masked) else self.NM[x].r(16)
                o.append(f"v_mfma_f32_32x32x16_bf16 {S.r(16)}, {self.Kf[ks].r(4)}, {self.Q[x][ks].r(4)}, {c}")
        return o

    def mask_prep(self, x, par):
        S = self.S[x][par]; o = []
        o.append(F(f"v_subrev_u32 v{self.thr}, s{self.s_u32}, v{self.qh[x]}"))
        for g in range(4):
            c = []
            for j in range(4):
                c.append(f"v_cmp_le_i32 s[{self.s_m+2*j}:{self.s_m+2*j+1}], {8*g+j}, v{self.thr}")
            o.append(F(c[:2])); o.append(F(c[2:]))
            c = []
            for j in range(4):
                c.append(f"v_cndmask_b32 {S+4*g+j}, v{self.ninf}, {self.NM[x]}, s[{self.s_m+2*j}:{self.s_m+2*j+1}]")
            o.append(F(c[:2])); o.append(F(c[2:]))
        return o

    def softmax(self, x, par, lo=0):
        S = self.S[x][par]; P = self.P[x][par]; E = self.E[x]; lt = self.lt[x]; o = []
        pend = []
        for k in range(8):
            e0 = E + (2 * k) % 8; e1 = e0 + 1
            o.append(F(f"v_exp_f32 v{e0}, {S+2*k}", lo=lo))
            o.append(F(f"v_exp_f32 v{e1}, {S+2*k+1}", lo=lo))
            if k > 0: o += self._consume(x, par, k - 1)
        o += self._consume(x, par, 7)
        return o
    def _consume(self, x, par, k):
        P = self.P[x][par]; E = self.E[x]; lt = self.lt[x]
        e0 = E + (2 * k) % 8; e1 = e0 + 1
        o = []
        if k == 0: o.append(F(f"v_add_f32 v{lt}, v{e0}, v{e1}"))
        else:
            o.append(F(f"v_add_f32 v{lt}, v{lt}, v{e0}")); o.append(F(f"v_add_f32 v{lt}, v{lt}, v{e1}"))
        o.append(F(f"v_cvt_pk_bf16_f32 {P+k}, v{e0}, v{e1}"))
        return o

    def dma_stage(self):
        sa = f"s[{self.SRDKV}:{self.SRDKV+3}]"; o = []
        for g in range(2):
            for n in range(4):
                ins = f"buffer_load_dwordx4 v{self.v_dma}, {sa}, s{self.s_goff} offen offset:{1024*n} lds".replace(" offset:0", "")
                if n == 0:
                    m0 = f"s_add_u32 m0, s{self.s_wslot}, s{self.s_wm0}" if g == 0 else "s_add_u32 m0, m0, 4096"
                    o.append(F([m0, "s_nop 0", ins]))
                elif n == 3:
                    o.append(F([ins, f"s_add_u32 s{self.s_goff}, s{self.s_goff}, {4096 if g == 0 else SLOT - 4096}"]))
                else: o.append(F(ins))
        return o

    def slot_adv(self):
        return [f"s_mov_b32 s{self.s_wslot}, s{self.s_t0}"]

    def check(self, blocks, par):
        p = self.p
        if len(blocks) == 2:
            p(f"v_max_f32 v{self.vchk}, v{self.lt[0]}, v{self.lt[1]}\nv_cmp_nle_f32 vcc, v{self.vchk}, v{self.vthr}")
        else:
            p(f"v_cmp_nle_f32 vcc, v{self.lt[blocks[0]]}, v{self.vthr}")
        stub = p.new('RS'); ret = p.new('RR')
        p(f"s_cbranch_vccnz {stub}"); p.label(ret)
        self.rare_sites.append((stub, ret, tuple(blocks), par))

    def step(self, par, pv, qk, sm, masked, kread, vread, extra=None, pre=None, ladd=None):
        p = self.p
        m1 = self.pv_mfmas(pv, 1 - par); m2 = self.qk_mfmas(qk, 1 - par, masked)
        n1, n2 = len(m1), len(m2); n = n1 + n2
        la = [F(f"v_add_f32 v{self.l[x]}, v{self.l[x]}, v{self.lt[x]}", hi=1) for x in (ladd or [])]
        kr = [F(x, hi=max(1, n1 // 2 - 1)) for x in self.k_reads(*kread)] if kread else []
        if kr and n2: pass
        start = 2 if n1 >= 8 else 0
        sms = []
        for x in sm:
            s = self.softmax(x, par, lo=start)
            s[0].lo = max(s[0].lo, start)
            sms.append(s)
        merged = list(la)
        if sms:
            L = max(len(s) for s in sms)
            for k in range(L):
                for s in sms:
                    if k < len(s): merged.append(s[k])
        for f in merged[len(la):]: f.lo = max(f.lo, start)
        vr_ = []
        if vread:
            for j, x in enumerate(self.v_reads(*vread)):
                lo_ = n1 + 1 if n2 else (j + 1) * len(pv) - 1
                vr_.append(F(x, lo=lo_, hi=max(lo_, n - 2)))
        mk = []
        for x in masked:
            m = self.mask_prep(x, 1 - par)
            for f in m: f.hi = max(n1 - 2, 0)
            mk += m
        streams = [kr, merged, mk]
        ex1 = [f for f in (extra or [])]
        p.ext(pre or [])
        if n1 and n2:
            m2 = list(m2)
            m2[0] = "s_waitcnt lgkmcnt(0)\n" + m2[0]
            p.ext(weave(m1 + m2, streams + [vr_, ex1]))
        elif n2:
            for f in kr + mk: p.ext(f.ins)
            p("s_nop 0\ns_waitcnt lgkmcnt(0)")
            for f in vr_: f.lo = 0
            p.ext(weave(m2, [merged, vr_, ex1]))
        else:
            p.ext(weave(m1, [kr, merged, vr_, ex1]))

    def iteration(self, lo, hi_masked, first=False):
        p = self.p
        both = [0, 1]; hi = [1]
        act = both if lo in ('full', 'masked') else hi
        mk = ([0] if lo == 'masked' else []) + ([1] if hi_masked else [])
        p("s_waitcnt vmcnt(16) lgkmcnt(0)\ns_barrier")
        dma = self.dma_stage()
        pv = both if lo != 'off' else hi
        sm = both if lo != 'off' else hi
        qk = act
        u = [f"s_add_u32 s{self.s_u32}, s{self.s_u32}, 32"]
        self.step(1, pv, qk, sm, [x for x in mk if x in qk], (self.v_cur, 0), (self.v_prev, 1), extra=dma[:4], pre=u, ladd=pv)
        self.check(sm, 1)
        pv2 = both if lo != 'off' else hi
        sm2 = both if lo in ('full', 'masked') else hi
        adv = [F([f"s_mov_b32 s{self.s_wslot}, s{self.s_prev}", f"s_mov_b32 s{self.s_prev}, s{self.s_slot}"]),
               F([f"s_add_u32 s{self.s_slot}, s{self.s_slot}, {SLOT}", f"s_cmp_eq_u32 s{self.s_slot}, {SLOT*NSLOT}",
                  f"s_cselect_b32 s{self.s_slot}, 0, s{self.s_slot}"])]
        self.step(0, pv2, qk, sm2, [x for x in mk if x in qk], (self.v_cur, 1), (self.v_cur, 0), extra=dma[4:] + adv,
                  pre=u + ["s_waitcnt lgkmcnt(0)"], ladd=pv2)
        self.check(sm2, 0)
        p(f"v_mov_b32 v{self.v_prev}, v{self.v_cur}\nv_add_u32 v{self.v_cur}, s{self.s_slot}, v{self.v_l16}")

    def loop(self, cnt_expr_fn, lo, hi_masked):
        p = self.p
        lab = p.new('AL'); skip = p.new('AS')
        cnt_expr_fn()
        p(f"s_cmp_le_i32 s{self.s_cnt}, 0\ns_cbranch_scc1 {skip}")
        p.label(lab)
        self.iteration(lo, hi_masked)
        p(f"s_sub_u32 s{self.s_cnt}, s{self.s_cnt}, 1\ns_cmp_lg_u32 s{self.s_cnt}, 0\ns_cbranch_scc1 {lab}")
        p.label(skip)

    def rare_routine(self, x, par, name):
        p = self.p; t = self.tmp
        S = self.S[x][par]; S2 = self.S[x][1 - par]; NM = self.NM[x]; O = self.O[x]
        p.label(name)
        p("s_nop 15")
        p(f"v_max3_f32 v{t}, {S}, {S+1}, {S+2}")
        for k in range(3, 15, 2): p(f"v_max3_f32 v{t}, v{t}, {S+k}, {S+k+1}")
        p(f"v_max_f32 v{t}, v{t}, {S+15}\nv_mov_b32 v{t+1}, v{t}\ns_nop 1\nv_permlane32_swap_b32 v{t}, v{t+1}\ns_nop 1")
        p(f"v_max_f32 v{t}, v{t}, v{t+1}\nv_ceil_f32 v{t}, v{t}\nv_max_f32 v{t}, 0, v{t}")
        p(f"v_sub_f32 v{t+1}, 0, v{t}\nv_exp_f32 v{t+1}, v{t+1}\ns_nop 0")
        p(f"v_mul_f32 v{self.l[x]}, v{self.l[x]}, v{t+1}")
        for r in range(16): p(f"v_sub_f32 {S+r}, {S+r}, v{t}\nv_sub_f32 {S2+r}, {S2+r}, v{t}\nv_sub_f32 {NM+r}, {NM+r}, v{t}")
        for db in range(4):
            for r0 in range(0, 16, 4):
                for r in range(4): p(f"v_accvgpr_read_b32 v{t+2+r}, {O[db]+r0+r}")
                for r in range(4): p(f"v_mul_f32 v{t+2+r}, v{t+2+r}, v{t+1}")
                for r in range(4): p(f"v_accvgpr_write_b32 {O[db]+r0+r}, v{t+2+r}")
        for f in self.softmax(x, par): p.ext(f.ins)
        p(f"s_nop 1\ns_setpc_b64 s[{self.s_ret}:{self.s_ret+1}]")

    def emit_rare(self):
        p = self.p
        for stub, ret, blocks, par in self.rare_sites:
            p.label(stub)
            for x in blocks: p(f"s_call_b64 s[{self.s_ret}:{self.s_ret+1}], RARE_{x}_{par}")
            p(f"s_branch {ret}")
        for x in range(2):
            for par in range(2): self.rare_routine(x, par, f"RARE_{x}_{par}")

    def epilogue(self, x, s_sb):
        p = self.p; t = self.tmp
        p(f"v_mov_b32 v{t}, v{self.l[x]}\nv_mov_b32 v{t+1}, v{self.l[x]}\ns_nop 1\nv_permlane32_swap_b32 v{t}, v{t+1}\ns_nop 1")
        p(f"v_add_f32 v{t}, v{t}, v{t+1}\nv_rcp_f32 v{t}, v{t}\ns_nop 0\nv_mul_f32 v{t}, v{t}, v{self.g[x]}")
        U = 128; D = 160
        j = 0
        for db in range(4):
            for half in range(2):
                u = U + 8 * (j % 4); d = D + 4 * (j % 8); j += 1
                for r in range(8): p(f"v_accvgpr_read_b32 v{u+r}, {self.O[x][db]+8*half+r}")
                for r in range(8): p(f"v_mul_f32 v{u+r}, v{u+r}, v{t}")
                for r in range(4): p(f"v_cvt_pk_bf16_f32 v{d+r}, v{u+2*r}, v{u+2*r+1}")
                ks = 2 * db + half
                if ks == 4: p(f"s_add_u32 s{s_sb}, s{s_sb}, 4096")
                p(f"buffer_store_dwordx4 v[{d}:{d+3}], v{self.v_l16}, s[{SRDW}:{SRDW+3}], s{s_sb} offen offset:{(ks%4)*1024} sc1".replace(" offset:0", ""))

def attn_phase(p):
    at = Attn(p)
    at.s_prev = 62
    S_I, S_H = at.s_i, at.s_h
    p(f"""s_and_b32 s{S_H}, s2, 7
s_lshl_b32 s{S_H}, s{S_H}, 2
s_bfe_u32 s62, s2, 0x20003
s_add_u32 s{S_H}, s{S_H}, s62
s_lshr_b32 s{S_I}, s2, 5""")
    srd(p, SRD1, P_X, hex(2048 * 1024)); srd(p, SRD2, P_WQ, hex(512 * 8192))
    qacc = [[V(64 + 64 * rb + 16 * db) for db in range(4)] for rb in range(2)]
    pr = Proj(p, 1, 24576, 6, SRD1, [SRD2], A(128), [qacc], ['wA'])
    pr.setup_addr(24)
    p(f"""s_lshl_b32 s62, s{S_I}, 7
s_lshl_b32 s63, s{S_WAVE}, 5
s_add_u32 s66, s62, s63
s_sub_u32 s67, 1920, s62
s_add_u32 s67, s67, s63
s_lshl_b32 s62, s66, 10
s_add_u32 s63, s62, {16*1024-1024}
s_lshl_b32 s64, s67, 10
s_add_u32 s65, s64, {16*1024-3*1024}
s_sub_u32 s64, s64, 2048""")
    act_dma_voff(p, pr, [62, 63, 64, 65], 24)
    p(f"s_mov_b32 s{pr.s_aoff}, 0\ns_lshl_b32 s{pr.s_woff}, s{S_H}, 8")
    p(f"""v_and_b32 v24, 31, v0
v_lshlrev_b32 v25, 2, v24
s_lshl_b32 s68, s66, 2
s_add_u32 s68, s68, {WS_G}
s_lshl_b32 s69, s67, 2
s_add_u32 s69, s69, {WS_G}
buffer_load_dword v{at.g[0]}, v25, s[{SRDW}:{SRDW+3}], s68 offen
buffer_load_dword v{at.g[1]}, v25, s[{SRDW}:{SRDW+3}], s69 offen
v_lshrrev_b32 v25, 5, v0
v_lshlrev_b32 v25, 2, v25
v_sub_u32 v24, v24, v25
v_add_u32 v{at.qh[0]}, s66, v24
v_add_u32 v{at.qh[1]}, s67, v24""")
    pr.issue_prologue(5)
    pr.run()
    p(f"v_mov_b32 v24, {fhex(QSCALE)}\ns_nop 7")
    for rb in range(2):
        for db in range(4):
            a = qacc[rb][db].i
            for r in range(0, 16, 2): p(f"v_pk_mul_f32 v[{a+r}:{a+r+1}], v[{a+r}:{a+r+1}], v[24:25] op_sel_hi:[1,0]")
            for half in range(2):
                q = at.Q[rb][2 * db + half].i
                for j in range(4): p(f"v_cvt_pk_bf16_f32 v{q+j}, v{a+8*half+2*j}, v{a+8*half+2*j+1}")
    p(f"""s_lshl_b32 s62, s{S_H}, 20
s_add_u32 s62, s62, {WS_KV}
s_add_u32 s{at.SRDKV}, s{P_WS}, s62
s_addc_u32 s{at.SRDKV+1}, s{P_WS+1}, 0
s_sub_u32 s63, 16, s{S_I}
s_lshl_b32 s{at.SRDKV+2}, s63, 16
s_mov_b32 s{at.SRDKV+3}, 0x20000
v_lshlrev_b32 v{at.v_l16}, 4, v0
s_lshl_b32 s63, s{S_WAVE}, 13
v_add_u32 v{at.v_dma}, s63, v{at.v_l16}
s_mov_b32 s{at.s_wm0}, s63
s_mov_b32 s{at.s_goff}, 0
s_barrier""")
    for s in range(3):
        p(f"s_mov_b32 s{at.s_wslot}, {s*SLOT}")
        for f in at.dma_stage(): p.ext(f.ins)
    p(f"""s_mov_b32 s{at.s_wslot}, {3*SLOT}
s_mov_b32 s{at.s_slot}, 0
s_mov_b32 s{at.s_prev}, {4*SLOT}
v_mov_b32 v{at.v_cur}, v{at.v_l16}
v_mov_b32 v{at.v_prev}, v{at.v_l16}
v_mov_b32 v{at.ninf}, 0xff800000
v_mov_b32 v{at.vthr}, {fhex(THR)}
s_mov_b32 s{at.s_u32}, 0""")
    for x in range(2):
        p(f"v_mov_b32 v{at.l[x]}, 0\nv_mov_b32 v{at.lt[x]}, 0")
        for r in range(16): p(f"v_mov_b32 {at.NM[x]+r}, 0")
        for par in range(2):
            for r in range(8): p(f"v_mov_b32 {at.P[x][par]+r}, 0")
        for db in range(4):
            for r in range(16): p(f"v_accvgpr_write_b32 {at.O[x][db]+r}, 0")
    for j in range(8):
        for r in range(4): p(f"v_accvgpr_write_b32 {at.Vf[j]+r}, 0")
    p("s_waitcnt vmcnt(16)\ns_barrier")
    for ins in at.k_reads(at.v_cur, 0): p(ins)
    for f in at.mask_prep(0, 0): p.ext(f.ins)
    p("s_nop 0\ns_waitcnt lgkmcnt(0)")
    p.ext(at.qk_mfmas([0, 1], 0, [0]))
    p("s_nop 15")
    t = at.tmp
    for x in range(2):
        S = at.S[x][0]
        p(f"v_max3_f32 v{t}, {S}, {S+1}, {S+2}")
        for k in range(3, 15, 2): p(f"v_max3_f32 v{t}, v{t}, {S+k}, {S+k+1}")
        p(f"v_max_f32 v{t}, v{t}, {S+15}\nv_mov_b32 v{t+1}, v{t}\ns_nop 1\nv_permlane32_swap_b32 v{t}, v{t+1}\ns_nop 1")
        p(f"v_max_f32 v{t}, v{t}, v{t+1}\nv_ceil_f32 v{t}, v{t}")
        for r in range(16): p(f"v_sub_f32 {S+r}, {S+r}, v{t}\nv_sub_f32 {at.NM[x]+r}, 0, v{t}")
    adv = [F([f"s_mov_b32 s{at.s_wslot}, s{at.s_prev}", f"s_mov_b32 s{at.s_prev}, s{at.s_slot}"]),
           F([f"s_add_u32 s{at.s_slot}, s{at.s_slot}, {SLOT}"])]
    at.step(0, [], [0, 1], [0, 1], [0], (at.v_cur, 1), (at.v_cur, 0), extra=at.dma_stage() + adv,
            pre=[f"s_add_u32 s{at.s_u32}, s{at.s_u32}, 32"], ladd=[])
    at.check([0, 1], 0)
    p(f"v_mov_b32 v{at.v_prev}, v{at.v_cur}\nv_add_u32 v{at.v_cur}, s{at.s_slot}, v{at.v_l16}")
    c = at.s_cnt
    at.loop(lambda: p(f"s_lshl_b32 s{c}, s{S_I}, 1\ns_sub_u32 s{c}, s{c}, 1"), 'full', False)
    at.loop(lambda: p(f"s_cmp_eq_u32 s{S_I}, 0\ns_cselect_b32 s{c}, 1, 2"), 'masked', False)
    at.iteration('T', True)
    at.loop(lambda: p(f"s_lshl_b32 s{c}, s{S_I}, 2\ns_sub_u32 s{c}, 27, s{c}"), 'off', False)
    at.loop(lambda: p(f"s_cmp_eq_u32 s{S_I}, 7\ns_cselect_b32 s{c}, 1, 2"), 'off', True)
    p("s_waitcnt lgkmcnt(0)")
    at.step(1, [1], [], [1], [], None, (at.v_prev, 1), ladd=[1])
    at.check([1], 1)
    p(f"v_add_f32 v{at.l[1]}, v{at.l[1]}, v{at.lt[1]}\ns_waitcnt lgkmcnt(0)")
    p.ext(at.pv_mfmas([1], 1))
    p(f"""s_lshl_b32 s62, s{S_I}, 2
s_add_u32 s62, s62, s{S_WAVE}
s_lshl_b32 s63, s62, 18
s_lshl_b32 s64, s{S_H}, 13
s_add_u32 s63, s63, s64
s_add_u32 s63, s63, {WS_CTX}
s_sub_u32 s65, 15, s{S_I}
s_lshl_b32 s65, s65, 2
s_add_u32 s65, s65, s{S_WAVE}
s_lshl_b32 s65, s65, 18
s_add_u32 s65, s65, s64
s_add_u32 s65, s65, {WS_CTX}
s_waitcnt vmcnt(0)""")
    at.epilogue(0, 63)
    at.epilogue(1, 65)
    return at
```

```python
from gl import *
import math
WS_H, WS_G, WS_FLG, WS_U, WS_KV, WS_CTX, WS_END = 0x10000, 0x220000, 0x230000, 0x400000, 0x800000, 0x2800000, 0x3800000
P_X, P_CKV, P_WQ, P_WK, P_WV, P_WO, P_BX, P_W1 = 4, 6, 8, 10, 12, 14, 16, 18
P_B1, P_W2, P_B2, P_GW, P_OUT, P_DBG, P_WS = 20, 22, 24, 26, 28, 30, 32
S_WAVE = 34
SRD0, SRD1, SRD2, SRDW = 36, 40, 44, 48
LOG2E = 1.4426950408889634

def srd(p, dst, ptr, size, off=None):
    if off is None:
        p(f"s_mov_b32 s{dst}, s{ptr}\ns_mov_b32 s{dst+1}, s{ptr+1}")
    else:
        p(f"s_add_u32 s{dst}, s{ptr}, {off}\ns_addc_u32 s{dst+1}, s{ptr+1}, 0")
    p(f"s_mov_b32 s{dst+2}, {size}\ns_mov_b32 s{dst+3}, 0x20000")

def prologue(p, end):
    p(f"""s_cmp_ge_u32 s2, 256
s_cbranch_scc1 {end}
s_load_dwordx16 s[4:19], s[0:1], 0
s_load_dwordx8 s[20:27], s[0:1], 64
s_load_dwordx4 s[28:31], s[0:1], 96
s_load_dwordx2 s[32:33], s[0:1], 112
v_lshrrev_b32 v1, 6, v0
v_and_b32 v0, 63, v0
v_readfirstlane_b32 s{S_WAVE}, v1 ;@wave
s_waitcnt lgkmcnt(0)""")
    srd(p, SRDW, P_WS, hex(WS_END))

def wave_reduce(p, rs):
    steps = ["quad_perm:[1,0,3,2] row_mask:0xf bank_mask:0xf", "quad_perm:[2,3,0,1] row_mask:0xf bank_mask:0xf",
             "row_half_mirror row_mask:0xf bank_mask:0xf", "row_mirror row_mask:0xf bank_mask:0xf",
             "row_bcast:15 row_mask:0xa bank_mask:0xf", "row_bcast:31 row_mask:0xc bank_mask:0xf"]
    pad = max(0, 3 - len(rs))
    p("s_nop 1")
    for st in steps:
        for r in rs: p(f"v_add_f32_dpp v{r}, v{r}, v{r} {st}")
        if pad: p(f"s_nop {pad-1}")
    p("s_nop 0")

def unpack8(p, src, dst):
    for k in range(4):
        p(f"v_lshlrev_b32 v{dst+2*k}, 16, v{src+k}")
        p(f"v_and_b32 v{dst+2*k+1}, 0xffff0000, v{src+k}")
```

```python
from gen_common import *

def ln_phase(p):
    srd(p, SRD1, P_X, hex(2048*1024)); srd(p, SRD2, P_GW, 1024)
    p(f"""s_lshl_b32 s52, s2, 3
s_lshl_b32 s53, s{S_WAVE}, 1
s_add_u32 s52, s52, s53
s_lshl_b32 s53, s52, 10
v_lshlrev_b32 v2, 4, v0
buffer_load_dwordx4 v[4:7], v2, s[{SRD1}:{SRD1+3}], s53 offen
buffer_load_dwordx4 v[8:11], v2, s[{SRD1}:{SRD1+3}], s53 offen offset:1024
buffer_load_dwordx4 v[20:23], v2, s[{SRD2}:{SRD2+3}], 0 offen
v_mov_b32 v70, {fhex(1/512)}
v_mov_b32 v71, {fhex(1e-5)}
v_mov_b32 v72, {fhex(-LOG2E)}
v_mov_b32 v76, 0
s_waitcnt vmcnt(1)""")
    X0, X1, G = 24, 32, 56
    Y0, Y1 = X0, X1
    unpack8(p, 4, X0); unpack8(p, 8, X1)
    p("s_waitcnt vmcnt(0)")
    unpack8(p, 20, G)
    p(f"v_add_f32 v64, v{X0}, v{X0+1}\nv_add_f32 v65, v{X1}, v{X1+1}\nv_mul_f32 v66, v{Y0}, v{G}\nv_mul_f32 v67, v{Y1}, v{G}")
    for j in range(2, 8): p(f"v_add_f32 v64, v64, v{X0+j}\nv_add_f32 v65, v65, v{X1+j}")
    for j in range(1, 8): p(f"v_fmac_f32 v66, v{Y0+j}, v{G+j}\nv_fmac_f32 v67, v{Y1+j}, v{G+j}")
    wave_reduce(p, [64, 65, 66, 67])
    for k in range(4): p(f"v_readlane_b32 s{54+k}, v{64+k}, 63")
    p("s_nop 1")
    p("v_mul_f32 v68, s54, v70\nv_mul_f32 v69, s55, v70\nv_mul_f32 v74, s56, v72\nv_mul_f32 v75, s57, v72")
    for j in range(8): p(f"v_sub_f32 v{X0+j}, v{X0+j}, v68\nv_sub_f32 v{X1+j}, v{X1+j}, v69")
    p(f"v_exp_f32 v74, v74\nv_exp_f32 v75, v75\nv_mul_f32 v64, v{X0}, v{X0}\nv_mul_f32 v65, v{X1}, v{X1}")
    for j in range(1, 8): p(f"v_fmac_f32 v64, v{X0+j}, v{X0+j}\nv_fmac_f32 v65, v{X1+j}, v{X1+j}")
    p("v_add_f32 v74, 1.0, v74\nv_add_f32 v75, 1.0, v75")
    wave_reduce(p, [64, 65])
    p("v_readlane_b32 s54, v64, 63\nv_readlane_b32 s55, v65, 63\nv_rcp_f32 v74, v74\nv_rcp_f32 v75, v75")
    p("v_fma_f32 v68, s54, v70, v71\nv_fma_f32 v69, s55, v70, v71\nv_rsq_f32 v68, v68\nv_rsq_f32 v69, v69\ns_nop 0")
    for j in range(8): p(f"v_mul_f32 v{X0+j}, v{X0+j}, v68\nv_mul_f32 v{X1+j}, v{X1+j}, v69")
    for k in range(4): p(f"v_cvt_pk_bf16_f32 v{4+k}, v{X0+2*k}, v{X0+2*k+1}\nv_cvt_pk_bf16_f32 v{8+k}, v{X1+2*k}, v{X1+2*k+1}")
    p(f"""s_add_u32 s53, s53, {WS_H}
s_lshl_b32 s58, s52, 2
s_add_u32 s58, s58, {WS_G}
buffer_store_dwordx4 v[4:7], v2, s[{SRDW}:{SRDW+3}], s53 offen sc1
buffer_store_dwordx4 v[8:11], v2, s[{SRDW}:{SRDW+3}], s53 offen offset:1024 sc1
s_mov_b64 exec, 1
buffer_store_dwordx2 v[74:75], v76, s[{SRDW}:{SRDW+3}], s58 offen sc1
s_mov_b64 exec, -1""")
```

```python
from gen_common import *

class Proj:
    def __init__(self, p, nW, slot, NS, srd_act, srd_w, FB, accs, order, sbase=52, vbase=2):
        self.p = p; self.nW = nW; self.slot = slot; self.NS = NS
        self.srd_act = srd_act; self.srd_w = srd_w
        self.FB = FB
        self.accs = accs
        self.order = order
        s = sbase
        self.s_aoff, self.s_woff, self.s_rslot, self.s_wslot, self.s_cnt, self.s_am0, self.s_wm0 = range(s, s + 7)
        v = vbase
        self.v_da = v
        self.v_dw = v + 4
        self.v_ba = v + 6
        self.v_bw = v + 8
        self.v_ra = v + 12
        self.v_rw = v + 14
        self.vend = v + 18
        self.ndma = 4 + 2 * nW
        self.fsz = 8 + 16 * nW

    def setup_addr(self, tmp):
        p = self.p; t0, t1, t2, t3 = tmp, tmp + 1, tmp + 2, tmp + 3
        p(f"""v_lshrrev_b32 v{t0}, 4, v0
v_lshlrev_b32 v{t1}, 2, v{t0}
v_and_b32 v{t2}, 15, v0
v_xor_b32 v{t2}, v{t2}, v{t1}
v_lshlrev_b32 v{t2}, 4, v{t2}
v_lshl_add_u32 v{t2}, v{t0}, 13, v{t2}
s_lshl_b32 s{self.s_cnt}, s{S_WAVE}, 16
v_add_u32 v{self.v_dw}, s{self.s_cnt}, v{t2}
v_add_u32 v{self.v_dw+1}, {4*8192-1024}, v{self.v_dw}""")
        p(f"""v_and_b32 v{t0}, 31, v0
v_lshrrev_b32 v{t1}, 5, v0
v_bfe_u32 v{t2}, v0, 2, 2
v_bfe_u32 v{t3}, v0, 4, 1
v_and_b32 v{t2}, 3, v{t2}""")
        p(f"""v_xor_b32 v{t2}, v{t2}, v{t1}
v_lshlrev_b32 v{t2}, 4, v{t2}
v_lshl_add_u32 v{t2}, v{t0}, 6, v{t2}
s_lshl_b32 s{self.s_cnt}, s{S_WAVE}, 12
v_add_u32 v{self.v_ba}, s{self.s_cnt}, v{t2}
v_xor_b32 v{self.v_ba+1}, 32, v{self.v_ba}""")
        p(f"""v_bfe_u32 v{t0}, v0, 2, 2
v_lshrrev_b32 v{t1}, 5, v0
v_lshl_add_u32 v{t1}, v{t1}, 3, v{t0}
v_lshlrev_b32 v{t1}, 8, v{t1}
v_bfe_u32 v{t2}, v0, 4, 1
v_lshlrev_b32 v{t2}, 5, v{t2}
v_and_b32 v{t3}, 3, v0
v_lshl_add_u32 v{t2}, v{t3}, 3, v{t2}
v_add_u32 v{t1}, v{t1}, v{t2}
v_add_u32 v{t1}, 16384, v{t1}
v_lshlrev_b32 v{t0}, 6, v{t0}""")
        for db in range(4):
            p(f"v_xor_b32 v{t2}, {64*db}, v{t0}\nv_add_u32 v{self.v_bw+db}, v{t1}, v{t2}")
        p(f"""s_lshl_b32 s{self.s_am0}, s{S_WAVE}, 12
s_lshl_b32 s{self.s_wm0}, s{S_WAVE}, 11
s_add_u32 s{self.s_wm0}, s{self.s_wm0}, 16384""")

    def act_voff(self, n, rowreg_expr_s, tmp):
        pass

    def dma_fillers(self, slot_s):
        fa = []
        sa = f"s[{self.srd_act}:{self.srd_act+3}]"
        for n in range(4):
            ins = f"buffer_load_dwordx4 v{self.v_da+n}, {sa}, s{self.s_aoff} offen offset:{1024*n} lds".replace(" offset:0", "")
            if n == 0: fa.append(F([f"s_add_u32 m0, s{slot_s}, s{self.s_am0}", "s_nop 0", ins]))
            else: fa.append(F(ins))
        fa[-1].ins.append(f"s_add_u32 s{self.s_aoff}, s{self.s_aoff}, 64"); fa[-1].cost += 4
        fw = []
        for wi in range(self.nW):
            sw = f"s[{self.srd_w[wi]}:{self.srd_w[wi]+3}]"
            for n in range(2):
                ins = f"buffer_load_dwordx4 v{self.v_dw+n}, {sw}, s{self.s_woff} offen offset:{1024*n} lds".replace(" offset:0", "")
                if n == 0:
                    m0 = f"s_add_u32 m0, s{slot_s}, s{self.s_wm0}" if wi == 0 else "s_add_u32 m0, m0, 8192"
                    fw.append(F([m0, "s_nop 0", ins]))
                else: fw.append(F(ins))
        fw[-1].ins.append(f"s_add_u32 s{self.s_woff}, s{self.s_woff}, {32*8192}"); fw[-1].cost += 4
        return fa, fw

    def reads(self, buf, ks):
        fb = self.FB + buf * self.fsz
        out = []
        for rb in range(2):
            out.append(f"ds_read_b128 {(fb + 4*rb).r(4)}, v{self.v_ra+ks} offset:{2048*rb}".replace(" offset:0", ""))
        for db in range(4):
            for wi in range(self.nW):
                for sec in range(2):
                    off = ks * 4096 + sec * 1024 + wi * 8192
                    out.append(f"ds_read_b64_tr_b16 {(fb + 8 + 16*wi + 4*db + 2*sec).r(2)}, v{self.v_rw+db} offset:{off}".replace(" offset:0", ""))
        return out

    def mfmas(self, buf, first=False):
        fb = self.FB + buf * self.fsz
        out = []
        for db in range(4):
            for wi in range(self.nW):
                for rb in range(2):
                    acc = self.accs[wi][rb][db]
                    a = (fb + 4 * rb).r(4); w = (fb + 8 + 16 * wi + 4 * db).r(4)
                    x, y = (w, a) if self.order[wi] == 'wA' else (a, w)
                    c = "0" if first else acc.r(16)
                    out.append(f"v_mfma_f32_32x32x16_bf16 {acc.r(16)}, {x}, {y}, {c}")
        return out

    def addr_update(self):
        o = [f"s_mov_b32 s{self.s_wslot}, s{self.s_rslot}",
             f"s_add_u32 s{self.s_rslot}, s{self.s_rslot}, {self.slot}",
             f"s_cmp_eq_u32 s{self.s_rslot}, {self.slot*self.NS}",
             f"s_cselect_b32 s{self.s_rslot}, 0, s{self.s_rslot}"]
        v = [f"v_add_u32 v{self.v_ra+k}, s{self.s_rslot}, v{self.v_ba+k}" for k in range(2)]
        v += [f"v_add_u32 v{self.v_rw+k}, s{self.s_rslot}, v{self.v_bw+k}" for k in range(4)]
        return o, v

    def issue_prologue(self, nst):
        p = self.p
        for s in range(nst):
            p(f"s_mov_b32 s{self.s_wslot}, {s*self.slot}")
            fa, fw = self.dma_fillers(self.s_wslot)
            for f in fa + fw: p.ext(f.ins)

    def iteration(self, dma, vm, first=False, extraA=None, extraB=None, update=True):
        p = self.p
        n = 8 * self.nW
        p(f"s_waitcnt vmcnt({vm}) lgkmcnt(0)\ns_barrier")
        fa, fw = self.dma_fillers(self.s_wslot) if dma else ([], [])
        rd = [F(x, hi=n // 2 + 1) for x in self.reads(0, 0)]
        if first:
            p.ext([x for f in rd for x in f.ins])
            for f in fa: p.ext(f.ins)
        else:
            p.ext(weave(self.mfmas(1), [rd, fa] + ([extraA] if extraA else [])))
        p("s_waitcnt lgkmcnt(0)")
        rd = [F(x, hi=n // 2 + 1) for x in self.reads(1, 1)]
        if update:
            so, vo = self.addr_update()
            fw = fw + [F(so, lo=n // 2 + 2)] + [F(x, lo=n // 2 + 2) for x in vo]
        st = [rd, fw]
        if extraB: st.append(extraB)
        p.ext(weave(self.mfmas(0, first=first), st))

    def run(self, extra=None):
        p = self.p; NS = self.NS; D = NS - 1; nd = self.ndma
        for k in range(2): p(f"v_mov_b32 v{self.v_ra+k}, v{self.v_ba+k}")
        for k in range(4): p(f"v_mov_b32 v{self.v_rw+k}, v{self.v_bw+k}")
        p(f"s_mov_b32 s{self.s_rslot}, 0\ns_mov_b32 s{self.s_wslot}, {(NS-1)*self.slot}")
        self.iteration(True, nd * (D - 1), first=True)
        nloop = 16 - D - 1
        lab = p.new('PJ')
        p(f"s_mov_b32 s{self.s_cnt}, {nloop}")
        p.label(lab)
        self.iteration(True, nd * (D - 1))
        p(f"s_sub_u32 s{self.s_cnt}, s{self.s_cnt}, 1\ns_cmp_lg_u32 s{self.s_cnt}, 0\ns_cbranch_scc1 {lab}")
        for j in range(D):
            self.iteration(False, nd * (D - 1 - j), update=(j < D - 1))
        p("s_waitcnt lgkmcnt(0)")
        p.ext(self.mfmas(1))

def act_dma_voff(p, pr, rows_s, tmp):
    t0, t1 = tmp, tmp + 1
    p(f"""v_bfe_u32 v{t0}, v0, 4, 2
v_and_b32 v{t1}, 3, v0
v_xor_b32 v{t0}, v{t0}, v{t1}
v_lshlrev_b32 v{t0}, 4, v{t0}
v_lshrrev_b32 v{t1}, 2, v0
v_lshl_add_u32 v{t0}, v{t1}, 10, v{t0}""")
    for n in range(4):
        p(f"v_add_u32 v{pr.v_da+n}, s{rows_s[n]}, v{t0}")

def kv_phase(p):
    S_H, S_B = 60, 61
    p(f"""s_and_b32 s{S_H}, s2, 7
s_lshl_b32 s{S_H}, s{S_H}, 2
s_bfe_u32 s62, s2, 0x20003
s_add_u32 s{S_H}, s{S_H}, s62
s_lshr_b32 s{S_B}, s2, 5""")
    srd(p, SRD0, P_CKV, hex(2048 * 1024)); srd(p, SRD1, P_WK, hex(512 * 8192)); srd(p, SRD2, P_WV, hex(512 * 8192))
    kacc = [[V(128 + 64 * rb + 16 * db) for db in range(4)] for rb in range(2)]
    vacc = [[A(64 * rb + 16 * db) for db in range(4)] for rb in range(2)]
    pr = Proj(p, 2, 32768, 5, SRD0, [SRD1, SRD2], A(128), [kacc, vacc], ['wA', 'aA'])
    pr.setup_addr(24)
    p(f"s_lshl_b32 s62, s{S_B}, 18\ns_lshl_b32 s63, s{S_WAVE}, 16\ns_add_u32 s62, s62, s63")
    for n in range(1, 4): p(f"s_add_u32 s{62+n}, s62, {n*(16*1024-1024)}")
    act_dma_voff(p, pr, [62, 63, 64, 65], 24)
    p(f"s_mov_b32 s{pr.s_aoff}, 0\ns_lshl_b32 s{pr.s_woff}, s{S_H}, 8")
    pr.issue_prologue(4)
    pr.run()
    p(f"""s_lshl_b32 s62, s{S_H}, 5
s_lshl_b32 s63, s{S_B}, 2
s_add_u32 s62, s62, s63
s_add_u32 s62, s62, s{S_WAVE}
s_lshl_b32 s62, s62, 15
s_add_u32 s62, s62, {WS_KV}
v_lshlrev_b32 v2, 4, v0
s_nop 7""")
    T = 32
    def store(src, off):
        nonlocal cur
        so = off // 4096 * 4096
        if so != cur:
            p(f"s_add_u32 s62, s62, {so-cur}"); cur = so
        o = off - so
        p(f"buffer_store_dwordx4 v[{src}:{src+3}], v2, s[{SRDW}:{SRDW+3}], s62 offen offset:{o} sc1".replace(" offset:0", ""))
    cur = 0; t = 0
    for rb in range(2):
        for db in range(4):
            for half in range(2):
                d = T + 4 * (t % 8); t += 1
                a = kacc[rb][db].i + 8 * half
                for j in range(4): p(f"v_cvt_pk_bf16_f32 v{d+j}, v{a+2*j}, v{a+2*j+1}")
                store(d, rb * 8192 + (2 * db + half) * 1024)
    for rb in range(2):
        for half in range(2):
            for db in range(4):
                d = T + 4 * (t % 8); t += 1
                a = vacc[rb][db].i + 8 * half
                u = 64 + 8 * (t % 2)
                for j in range(8): p(f"v_accvgpr_read_b32 v{u+j}, a{a+j}")
                for j in range(4): p(f"v_cvt_pk_bf16_f32 v{d+j}, v{u+2*j}, v{u+2*j+1}")
                store(d, 16384 + (2 * rb + half) * 4096 + db * 1024)
```

```python
from gen_common import *

RING = 10
WREG = RING * 4096

class Stream:
    def __init__(self, p, FB, acc, sbase=52, vbase=2):
        self.p = p; self.FB = FB; self.acc = acc
        s = sbase
        self.s_o0, self.s_o1, self.s_slot, self.s_cnt, self.s_base, self.s_t = range(s, s + 6)
        v = vbase
        self.v_d = v
        self.v_b = v + 4
        self.v_r = v + 7
        self.vend = v + 10

    def setup_common(self, perm, tmp):
        p = self.p; t0, t1, t2, t3 = tmp, tmp + 1, tmp + 2, tmp + 3
        p(f"""s_mul_i32 s{self.s_base}, s{S_WAVE}, {WREG}
v_bfe_u32 v{t0}, v0, 2, 2
v_lshrrev_b32 v{t1}, 5, v0
v_lshl_add_u32 v{t1}, v{t1}, {2 if perm else 3}, v{t0}
v_lshlrev_b32 v{t1}, 7, v{t1}
v_bfe_u32 v{t2}, v0, 4, 1
v_lshlrev_b32 v{t2}, 5, v{t2}
v_and_b32 v{t3}, 3, v0
v_lshl_add_u32 v{t2}, v{t3}, 3, v{t2}
v_add_u32 v{t1}, v{t1}, v{t2}
v_bfe_u32 v{t0}, v0, 3, 1
v_lshlrev_b32 v{t0}, 6, v{t0}
v_add_u32 v{t1}, s{self.s_base}, v{t1}
v_add_u32 v{self.v_b}, v{t1}, v{t0}
v_xor_b32 v{t0}, 64, v{t0}
v_add_u32 v{self.v_b+1}, v{t1}, v{t0}
v_lshlrev_b32 v{t0}, 4, v0
v_add_u32 v{self.v_b+2}, s{self.s_base}, v{t0}""")

    def tr_voff(self, k, rowstride, tmp):
        p = self.p; t0, t1 = tmp, tmp + 1
        p(f"""v_bfe_u32 v{t0}, v0, 4, 1
v_lshlrev_b32 v{t0}, 2, v{t0}
v_and_b32 v{t1}, 7, v0
v_xor_b32 v{t0}, v{t0}, v{t1}
v_lshlrev_b32 v{t0}, 4, v{t0}
v_lshrrev_b32 v{t1}, 3, v0
v_mul_u32_u24 v{t1}, {rowstride}, v{t1}
v_add_u32 v{self.v_d+k}, v{t0}, v{t1}
v_add_u32 v{self.v_d+k+1}, {8*rowstride-1024}, v{self.v_d+k}""")

    def direct_voff(self, k, blkstride):
        p = self.p
        p(f"v_lshlrev_b32 v{self.v_d+k}, 4, v0\nv_add_u32 v{self.v_d+k+1}, {blkstride-1024}, v{self.v_d+k}")

    def dma(self, srdA, srdB, stepA, stepB):
        a = f"s[{srdA}:{srdA+3}]"; b = f"s[{srdB}:{srdB+3}]"
        return [F([f"s_add_u32 m0, s{self.s_slot}, s{self.s_base}", "s_nop 0",
                   f"buffer_load_dwordx4 v{self.v_d}, {a}, s{self.s_o0} offen lds"]),
                F(f"buffer_load_dwordx4 v{self.v_d+1}, {a}, s{self.s_o0} offen offset:1024 lds"),
                F([f"buffer_load_dwordx4 v{self.v_d+2}, {b}, s{self.s_o1} offen offset:2048 lds", f"s_add_u32 s{self.s_o0}, s{self.s_o0}, {stepA}"]),
                F([f"buffer_load_dwordx4 v{self.v_d+3}, {b}, s{self.s_o1} offen offset:3072 lds", f"s_add_u32 s{self.s_o1}, s{self.s_o1}, {stepB}"])]

    def slot_adv(self):
        return [f"s_add_u32 s{self.s_slot}, s{self.s_slot}, 4096", f"s_cmp_eq_u32 s{self.s_slot}, {WREG}",
                f"s_cselect_b32 s{self.s_slot}, 0, s{self.s_slot}"]

    def reads(self, buf, mode):
        fb = self.FB + 16 * buf; o = []
        sec = 512 if mode == 'tt' else 1024
        for blk in range(2):
            for s in range(2):
                o.append(f"ds_read_b64_tr_b16 {(fb + 4*blk + 2*s).r(2)}, v{self.v_r+blk} offset:{s*sec}".replace(" offset:0", ""))
        for blk in range(2):
            if mode == 'tt':
                for s in range(2):
                    o.append(f"ds_read_b64_tr_b16 {(fb + 8 + 4*blk + 2*s).r(2)}, v{self.v_r+blk} offset:{2048 + s*sec}")
            else:
                o.append(f"ds_read_b128 {(fb + 8 + 4*blk).r(4)}, v{self.v_r+2} offset:{2048 + 1024*blk}")
        return o

    def mfmas(self, buf, op0_is_A, first=False):
        fb = self.FB + 16 * buf; o = []
        for i in range(2):
            for j in range(2):
                a = (fb + 4 * i) if op0_is_A else (fb + 8 + 4 * i)
                b = (fb + 8 + 4 * j) if op0_is_A else (fb + 4 * j)
                acc = self.acc[i][j]
                o.append(f"v_mfma_f32_32x32x16_bf16 {acc.r(16)}, {a.r(4)}, {b.r(4)}, {'0' if first else acc.r(16)}")
        return o

    def addr_upd(self, mode):
        n = 2 if mode == 'tt' else 3
        return [f"v_add_u32 v{self.v_r+k}, s{self.s_slot}, v{self.v_b+k}" for k in range(n)]

    def run(self, nsteps, mode, op0_is_A, srdA, srdB, stepA, stepB, zero_acc=True, extra=None):
        p = self.p
        nd = 4
        p(f"s_mov_b32 s{self.s_slot}, 0")
        for k in range(RING):
            for f in self.dma(srdA, srdB, stepA, stepB): p.ext(f.ins)
            p.ext(self.slot_adv())
        n = 2 if mode == 'tt' else 3
        for k in range(n): p(f"v_mov_b32 v{self.v_r+k}, v{self.v_b+k}")
        if zero_acc:
            for i in range(2):
                for j in range(2):
                    for r in range(16):
                        a = self.acc[i][j] + r
                        p(f"v_mov_b32 {a}, 0" if a.f == 'v' else f"v_accvgpr_write_b32 {a}, 0")
        p(f"s_waitcnt vmcnt({nd*(RING-1)})")
        p.ext(self.reads(0, mode))
        p(f"s_mov_b32 s{self.s_cnt}, {nsteps//2}")
        lab = p.new('ST'); p.label(lab)
        for buf in range(2):
            pre = [f"s_waitcnt vmcnt({nd*(RING-2)}) lgkmcnt(0)"]
            kill = []
            if buf == 0:
                kill = [f"s_cmp_le_u32 s{self.s_cnt}, {RING//2}",
                        f"s_cselect_b32 s{srdA+2}, 0, s{srdA+2}", f"s_cselect_b32 s{srdB+2}, 0, s{srdB+2}"]
            d = self.dma(srdA, srdB, stepA, stepB)
            m0 = d[0].ins[0]
            head = kill + [m0] + self.slot_adv() + self.addr_upd(mode)
            d[0] = F(d[0].ins[2:])
            rd = [F(x) for x in self.reads(1 - buf, mode)]
            p.ext(pre); p.ext(head)
            st = [rd, d] + ([extra(buf)] if extra else [])
            p.ext(weave(self.mfmas(buf, op0_is_A), st, budget=60))
        p(f"s_sub_u32 s{self.s_cnt}, s{self.s_cnt}, 1\ns_cmp_lg_u32 s{self.s_cnt}, 0\ns_cbranch_scc1 {lab}")
        p("s_waitcnt vmcnt(0) lgkmcnt(0)")

    def reduce(self, dst):
        p = self.p
        t = self.v_r
        p(f"v_mov_b32 v{t}, v{self.v_b+2}\ns_nop 7")
        for i in range(2):
            for j in range(2):
                for q in range(4):
                    p(f"ds_write_b128 v{t}, {(self.acc[i][j] + 4*q).r(4)} offset:{(2*i+j)*4096 + q*1024}".replace(" offset:0", ""))
        p(f"""v_lshlrev_b32 v{t+1}, 4, v0
s_lshl_b32 s{self.s_t}, s{S_WAVE}, 12
v_add_u32 v{t+1}, s{self.s_t}, v{t+1}
s_waitcnt lgkmcnt(0)
s_barrier""")
        for w in range(4):
            base = w * WREG
            if base >= 65536:
                pass
            for q in range(4):
                off = base + q * 1024
                if off < 65536:
                    p(f"ds_read_b128 v[{dst+16*w+4*q}:{dst+16*w+4*q+3}], v{t+1} offset:{off}".replace(" offset:0", ""))
                else:
                    p(f"ds_read_b128 v[{dst+16*w+4*q}:{dst+16*w+4*q+3}], v{t+2} offset:{off-65536}".replace(" offset:0", ""))
            if w == 0: p(f"v_add_u32 v{t+2}, 0x10000, v{t+1}")
        p("s_waitcnt lgkmcnt(8)")
        for r in range(16): p(f"v_add_f32 v{dst+r}, v{dst+r}, v{dst+16+r}")
        p("s_waitcnt lgkmcnt(0)")
        for r in range(16): p(f"v_add_f32 v{dst+32+r}, v{dst+32+r}, v{dst+48+r}")
        for r in range(16): p(f"v_add_f32 v{dst+r}, v{dst+r}, v{dst+32+r}")

def gemm1_phase(p, end):
    p(f"""s_lshr_b32 s60, s2, 3
s_cmp_ge_u32 s60, 28
s_cbranch_scc1 {end}
s_and_b32 s61, s2, 7
s_mul_i32 s61, s61, 28
s_add_u32 s60, s60, s61
s_lshr_b32 s61, s60, 3
s_and_b32 s60, s60, 7""")
    S_DT, S_FT = 60, 61
    srd(p, SRD0, P_W1, hex(2048 * 3584)); srd(p, SRD1, P_WS, hex(WS_END)); srd(p, SRD2, P_B1, 3584)
    acc = [[A(32 * i + 16 * j) for j in range(2)] for i in range(2)]
    st = Stream(p, V(64), acc)
    st.setup_common(False, 24)
    st.tr_voff(0, 3584, 24); st.tr_voff(2, 1024, 24)
    p(f"""s_mul_i32 s{st.s_o0}, s{S_WAVE}, {512*3584}
s_lshl_b32 s62, s{S_FT}, 7
s_add_u32 s{st.s_o0}, s{st.s_o0}, s62
s_lshl_b32 s{st.s_o1}, s{S_WAVE}, 19
s_lshl_b32 s62, s{S_DT}, 7
s_add_u32 s{st.s_o1}, s{st.s_o1}, s62
s_add_u32 s{st.s_o1}, s{st.s_o1}, {WS_H-2048}""")
    p(f"""s_lshr_b32 s62, s{S_WAVE}, 1
s_lshl_b32 s62, s62, 6
s_lshl_b32 s63, s{S_FT}, 7
s_add_u32 s62, s62, s63
v_lshrrev_b32 v24, 5, v0
v_lshlrev_b32 v24, 3, v24""")
    for g in range(4):
        p(f"buffer_load_dwordx2 v[{32+2*g}:{33+2*g}], v24, s[{SRD2}:{SRD2+3}], s62 offen offset:{16*g}".replace(" offset:0", ""))
    st.run(32, 'tt', True, SRD0, SRD1, 16 * 3584, 16 * 1024)
    D = 96
    st.reduce(D)
    for g in range(4):
        for k in range(2):
            p(f"v_lshlrev_b32 v{40+4*g+2*k}, 16, v{32+2*g+k}\nv_and_b32 v{41+4*g+2*k}, 0xffff0000, v{32+2*g+k}")
    k1 = -2 * LOG2E * math.sqrt(2 / math.pi); k2 = k1 * 0.044715
    p(f"v_mov_b32 v56, {fhex(k1)}\nv_mov_b32 v57, {fhex(k2)}")
    for r in range(16): p(f"v_add_f32 v{D+r}, v{D+r}, v{40+r}")
    for r in range(16): p(f"v_mul_f32 v{D+16+r}, v{D+r}, v{D+r}")
    for r in range(16): p(f"v_fma_f32 v{D+16+r}, v{D+16+r}, v57, v56")
    for r in range(16): p(f"v_mul_f32 v{D+16+r}, v{D+16+r}, v{D+r}")
    for r in range(16): p(f"v_exp_f32 v{D+16+r}, v{D+16+r}")
    for r in range(16): p(f"v_add_f32 v{D+16+r}, 1.0, v{D+16+r}")
    for r in range(16): p(f"v_rcp_f32 v{D+16+r}, v{D+16+r}")
    for r in range(16): p(f"v_mul_f32 v{D+r}, v{D+r}, v{D+16+r}")
    for k in range(8): p(f"v_cvt_pk_bf16_f32 v{D+32+k}, v{D+2*k}, v{D+2*k+1}")
    p(f"""s_and_b32 s62, s{S_WAVE}, 1
s_lshl_b32 s63, s{S_DT}, 1
s_add_u32 s62, s62, s63
s_mul_i32 s62, s62, 112
s_lshl_b32 s63, s{S_FT}, 2
s_add_u32 s62, s62, s63
s_lshr_b32 s63, s{S_WAVE}, 1
s_lshl_b32 s63, s63, 1
s_add_u32 s62, s62, s63
s_lshl_b32 s62, s62, 10
s_add_u32 s62, s62, {WS_U}
v_lshlrev_b32 v24, 4, v0
buffer_store_dwordx4 v[{D+32}:{D+35}], v24, s[{SRDW}:{SRDW+3}], s62 offen sc1
buffer_store_dwordx4 v[{D+36}:{D+39}], v24, s[{SRDW}:{SRDW+3}], s62 offen offset:1024 sc1""")

def final_phase(p):
    S_ST, S_MT = 60, 61
    p(f"""s_and_b32 s{S_ST}, s2, 7
s_lshl_b32 s{S_ST}, s{S_ST}, 2
s_lshr_b32 s62, s2, 6
s_add_u32 s{S_ST}, s{S_ST}, s62
s_bfe_u32 s{S_MT}, s2, 0x30003""")
    srd(p, SRD0, P_W2, hex(1792 * 4096)); srd(p, SRD1, P_WS, hex(WS_END)); srd(p, SRD2, P_B2, 4096)
    acc = [[V(128 + 32 * i + 16 * j) for j in range(2)] for i in range(2)]
    st = Stream(p, V(64), acc)
    st.setup_common(True, 24)
    p(f"""v_and_b32 v24, 31, v0
v_lshlrev_b32 v25, 2, v24
s_lshl_b32 s62, s{S_ST}, 8
s_add_u32 s62, s62, {WS_G}
buffer_load_dword v28, v25, s[{SRDW}:{SRDW+3}], s62 offen
buffer_load_dword v29, v25, s[{SRDW}:{SRDW+3}], s62 offen offset:128
s_and_b32 s63, s{S_WAVE}, 1
s_lshl_b32 s63, s63, 6
s_lshl_b32 s62, s{S_ST}, 7
s_add_u32 s62, s62, s63
v_lshlrev_b32 v25, 1, v24
buffer_load_ushort v31, v25, s[{SRD2}:{SRD2+3}], s62 offen""")
    st.tr_voff(0, 4096, 24); st.direct_voff(2, 112 * 1024)
    p(f"""s_mul_i32 s{st.s_o0}, s{S_WAVE}, {28*16*4096}
s_lshl_b32 s62, s{S_ST}, 7
s_add_u32 s{st.s_o0}, s{st.s_o0}, s62
s_mul_i32 s{st.s_o1}, s{S_MT}, {2*112*1024}
s_mul_i32 s62, s{S_WAVE}, {28*1024}
s_add_u32 s{st.s_o1}, s{st.s_o1}, s62
s_add_u32 s{st.s_o1}, s{st.s_o1}, {WS_U-2048}""")
    st.run(28, 'td', False, SRD0, SRD1, 16 * 4096, 1024)
    p("v_sub_f32 v28, 1.0, v28\nv_sub_f32 v29, 1.0, v29\ns_nop 7\ns_nop 3")
    for i in range(2):
        for j in range(2):
            for r in range(16): p(f"v_mul_f32 {acc[i][j]+r}, {acc[i][j]+r}, v{28+j}")
    srd(p, SRD0, P_WO, hex(4096 * 1024)); srd(p, SRD1, P_WS, hex(WS_END))
    st.tr_voff(0, 1024, 24); st.direct_voff(2, 256 * 1024)
    p(f"""s_lshl_b32 s{st.s_o0}, s{S_WAVE}, 20
s_lshl_b32 s62, s{S_MT}, 7
s_add_u32 s{st.s_o0}, s{st.s_o0}, s62
s_lshl_b32 s{st.s_o1}, s{S_ST}, 19
s_lshl_b32 s62, s{S_WAVE}, 16
s_add_u32 s{st.s_o1}, s{st.s_o1}, s62
s_add_u32 s{st.s_o1}, s{st.s_o1}, {WS_CTX-2048}""")
    st.run(64, 'td', True, SRD0, SRD1, 16 * 1024, 1024, zero_acc=False)
    D = 192
    st.reduce(D)
    p(f"""s_bitcmp1_b32 s{S_WAVE}, 0
s_cselect_b64 vcc, -1, 0
v_lshlrev_b32 v31, 16, v31
v_cndmask_b32 v30, v28, v29, vcc
v_mul_f32 v30, v30, v31""")
    for r in range(16): p(f"v_add_f32 v{D+r}, v{D+r}, v30")
    for k in range(8): p(f"v_cvt_pk_bf16_f32 v{D+16+k}, v{D+2*k}, v{D+2*k+1}")
    p("s_nop 1")
    for gq in (0, 2):
        b = D + 16 + 2 * gq
        p(f"v_permlane32_swap_b32 v{b}, v{b+2}\nv_permlane32_swap_b32 v{b+1}, v{b+3}")
    srd(p, SRD2, P_OUT, hex(2048 * 1024))
    p(f"""s_and_b32 s62, s{S_WAVE}, 1
s_lshl_b32 s62, s62, 5
s_lshl_b32 s63, s{S_ST}, 6
s_add_u32 s62, s62, s63
s_lshl_b32 s62, s62, 10
s_lshr_b32 s63, s{S_WAVE}, 1
s_lshl_b32 s63, s63, 6
s_add_u32 s62, s62, s63
s_lshl_b32 s63, s{S_MT}, 7
s_add_u32 s62, s62, s63
v_and_b32 v24, 31, v0
v_lshlrev_b32 v24, 10, v24
v_lshrrev_b32 v25, 5, v0
v_lshl_add_u32 v24, v25, 4, v24
buffer_store_dwordx4 v[{D+16}:{D+19}], v24, s[{SRD2}:{SRD2+3}], s62 offen
buffer_store_dwordx4 v[{D+20}:{D+23}], v24, s[{SRD2}:{SRD2+3}], s62 offen offset:32""")
```

```python
import struct

def vr(a, n=1): return f"v{a}" if n == 1 else f"v[{a}:{a+n-1}]"
def ar(a, n=1): return f"a{a}" if n == 1 else f"a[{a}:{a+n-1}]"
def sr(a, n=1): return f"s{a}" if n == 1 else f"s[{a}:{a+n-1}]"
def f2u(x): return struct.unpack('<I', struct.pack('<f', x))[0]
def fhex(x): return f"0x{f2u(x):08x}"

class R:
    def __init__(self, f, i): self.f = f; self.i = i
    def __add__(self, k): return R(self.f, self.i + k)
    def r(self, n=1): return f"{self.f}{self.i}" if n == 1 else f"{self.f}[{self.i}:{self.i+n-1}]"
    def __str__(self): return self.r(1)
def V(i): return R('v', i)
def A(i): return R('a', i)

COST = {'v_exp_f32': 8, 'v_rcp_f32': 8, 'v_rsq_f32': 8, 'v_log_f32': 8, 'v_cvt_pk_bf16_f32': 5}
def cost(ins):
    op = ins.split()[0]
    if op in COST: return COST[op]
    if op == 's_nop':
        return 4 * (int(ins.split()[1]) + 1)
    if op.startswith('buffer_'): return 6
    return 4

class Prog:
    def __init__(self): self.L = []; self.uid = 0
    def __call__(self, s):
        for ln in s.split('\n'):
            ln = ln.strip()
            if ln: self.L.append(ln)
    def ext(self, lst):
        for s in lst: self(s)
    def label(self, n): self.L.append(n + ':')
    def new(self, p='L'):
        self.uid += 1; return f"{p}{self.uid}"
    def text(self): return '\n'.join(self.L) + '\n'

class F:
    def __init__(self, ins, lo=0, hi=10**6):
        self.ins = [ins] if isinstance(ins, str) else list(ins)
        self.lo = lo; self.hi = hi
        self.cost = sum(cost(x) for x in self.ins)

def weave(mfmas, streams, budget=24, pre=None, even=True):
    n = len(mfmas)
    out = list(pre or [])
    idx = [0] * len(streams)
    total = sum(f.cost for s in streams for f in s)
    placed = 0
    for g in range(n):
        out.append(mfmas[g])
        used = 0
        target = total * (g + 1) / n if even else 10**9
        while True:
            cands = []
            for k, s in enumerate(streams):
                if idx[k] < len(s) and s[idx[k]].lo <= g:
                    dl = min(f.hi for f in s[idx[k]:])
                    cands.append((dl, k))
            if not cands: break
            cands.sort()
            dl, k = cands[0]
            f = streams[k][idx[k]]
            must = dl <= g or g == n - 1
            if not must:
                if used + f.cost > budget and used > 0: break
                if placed + f.cost / 2 > target and not any_urgent(streams, idx, g, n, budget): break
            out.extend(f.ins); used += f.cost; placed += f.cost; idx[k] += 1
    for k, s in enumerate(streams):
        assert idx[k] == len(s), "unplaced fillers (lo beyond last gap?)"
    return out

def any_urgent(streams, idx, g, n, budget):
    items = []
    for k, s in enumerate(streams):
        for f in s[idx[k]:]:
            items.append((min(f.hi, n - 1), f.cost))
    items.sort()
    acc = 0
    for hi, c in items:
        acc += c
        if acc > (hi - g) * budget: return True
    return False

def kernel_wrap(name, body, vgpr=512, accum=256, sgpr=102):
    return f""".globl {name}
.p2align 8
.type {name},@function
{name}:
{body}.section .rodata,"a"
.p2align 6
.amdhsa_kernel {name}
.amdhsa_next_free_vgpr {vgpr}
.amdhsa_next_free_sgpr {sgpr}
.amdhsa_accum_offset {accum}
.amdhsa_group_segment_fixed_size 0
.amdhsa_kernarg_size 120
.amdhsa_user_sgpr_count 2
.amdhsa_user_sgpr_kernarg_segment_ptr 1
.amdhsa_system_sgpr_workgroup_id_x 1
.end_amdhsa_kernel
.text
"""
```

```python
import sys
from gen_common import *
from gen_ln import ln_phase
from gen_proj import kv_phase
from gen_stream import gemm1_phase, final_phase
from gen_attn import attn_phase
import chk

NAME = "gated_mix__compressed_kv_cla__mixer_token_mlp__prompt"
HEADER = open('cdna_kernels/' + NAME + '.s.ref').read().split('; Override')[0]

def build_multi():
    ks = []
    def mk(name, fn):
        p = Prog(); p.uid = len(ks) * 1000
        end = f"END_{name}"
        prologue(p, end)
        r = fn(p, end)
        p.label(end); p("s_endpgm")
        if r is not None: r.emit_rare_renamed = True
        return p
    out = []
    p = Prog(); prologue(p, "END_ln"); ln_phase(p); p.label("END_ln"); p("s_endpgm"); out.append(("ln_kernel", p))
    p = Prog(); p.uid = 1000; prologue(p, "END_kv"); kv_phase(p); p.label("END_kv"); p("s_endpgm"); out.append(("kv_kernel", p))
    p = Prog(); p.uid = 2000; prologue(p, "END_g1"); gemm1_phase(p, "END_g1"); p.label("END_g1"); p("s_endpgm"); out.append(("g1_kernel", p))
    p = Prog(); p.uid = 3000; prologue(p, "END_at"); at = attn_phase(p); p.label("END_at"); p("s_endpgm"); at.emit_rare(); out.append(("at_kernel", p))
    p = Prog(); p.uid = 4000; prologue(p, "END_fin"); final_phase(p); p.label("END_fin"); p("s_endpgm"); out.append(("fin_kernel", p))
    hdr = HEADER
    for name, _ in out:
        hdr += f"; @launch kernel={name} grid=(256,1,1) block=(256,1,1) lds=163840\n"
    txt = hdr + '.amdgcn_target "amdgcn-amd-amdhsa--gfx950"\n.text\n'
    for name, p in out:
        txt += kernel_wrap(name, p.text())
    return txt, [n for n, _ in out]

if __name__ == '__main__':
    txt, names = build_multi()
    dst = sys.argv[1] if len(sys.argv) > 1 else 'multi.s'
    open(dst, 'w').write(txt)
    print(len(txt), 'bytes', txt.count('\n'), 'lines')
    for n in names:
        chk.check(txt, n, wgs=(0, 37, 231, 255) if n == 'at_kernel' else (5,), waves=(0, 3))
    cnt = [0]
    def pol(i):
        cnt[0] += 1
        return cnt[0] % 3 == 0
    chk.check(txt, 'at_kernel', wgs=(0, 100, 255), waves=(1,), vcc_policy=pol)
```
